```python
import torch

def _softmax(x, axis=-1):
    return torch.softmax(x, dim=axis)

def _gelu(x):
    return torch.nn.functional.gelu(x, approximate='tanh')

def _silu(x):
    return torch.nn.functional.silu(x)

def _sigmoid(x):
    return torch.sigmoid(x)

def _layernorm(x, axis=-1, eps=1e-05):
    m = x.mean(dim=axis, keepdim=True)
    v = x.var(dim=axis, keepdim=True, unbiased=False)
    return (x - m) / torch.sqrt(v + eps)

def _scatter_add(tgt, idx, src, axis=0):
    return tgt.clone().index_add_(axis, idx, src)

def _segment_sum(src, seg, n):
    out = torch.zeros((n,) + src.shape[1:], dtype=src.dtype)
    return out.index_add_(0, seg, src)

def _pad(x, pw):
    flat = tuple((v for pair in reversed(pw) for v in pair))
    return torch.nn.functional.pad(x, flat)
kernel_name = 'adaLN_cond__sliding_block__dense_activation_squared_relu__prompt'

def setup_inputs():

    _w = lambda a: (lambda t: t.to(torch.bfloat16) if t.is_floating_point() else t)(torch.as_tensor(a))

    def _A_setup():
        B, S, D = (1, 2048, 512)
        return {'x': _w((lambda *s: torch.randn(*s, dtype=torch.bfloat16) * 0.05)(B, S, D)), 'wqkv': _w((lambda *s: torch.randn(*s, dtype=torch.bfloat16) * 0.05)(D, 3 * D)), 'wo': _w((lambda *s: torch.randn(*s, dtype=torch.bfloat16) * 0.05)(D, D))}
    _A_in = _A_setup()

    def _B_setup():
        B, S, D, F = (1, 2048, 512, 1792)
        return {'x': _w((lambda *s: torch.randn(*s, dtype=torch.bfloat16) * 0.05)(B, S, D)), 'w1': _w((lambda *s: torch.randn(*s, dtype=torch.bfloat16) * 0.05)(D, F)), 'b1': _w((lambda *s: torch.randn(*s, dtype=torch.bfloat16) * 0.4)(F)), 'w2': _w((lambda *s: torch.randn(*s, dtype=torch.bfloat16) * 0.05)(F, D)), 'b2': _w((lambda *s: torch.randn(*s, dtype=torch.bfloat16) * 3.2)(D))}
    _B_in = _B_setup()
    return {'A_x': _A_in['x'], 'A_wqkv': _A_in['wqkv'], 'A_wo': _A_in['wo'], 'B_x': _B_in['x'], 'B_w1': _B_in['w1'], 'B_b1': _B_in['b1'], 'B_w2': _B_in['w2'], 'B_b2': _B_in['b2'], 'c': _w((lambda *s: torch.randn(*s, dtype=torch.bfloat16) * 0.1)(1, 512) * 8.0), 'w_mod': _w((lambda *s: torch.randn(*s, dtype=torch.bfloat16) * 0.1)(512, 6 * 512) * 512 ** (-0.5) * 8.0)}

def reference(A_x, A_wqkv, A_wo, B_x, B_w1, B_b1, B_w2, B_b2, c, w_mod):

    def _A_ref(x, wqkv, wo):
        B, S, D = x.shape
        H = 32
        Dh = D // H
        W = 256
        qkv = (lambda x, *d: x.permute(*d))((x @ wqkv).reshape(B, S, 3, H, Dh), 2, 0, 3, 1, 4)
        q, k, v = (qkv[0], qkv[1], qkv[2])
        scores = torch.einsum('bhqd,bhkd->bhqk', q, k) * Dh ** (-0.5)
        idx = torch.arange(S)
        mask = (idx[:, None] - idx[None, :] >= 0) & (idx[:, None] - idx[None, :] < W)
        scores = torch.where(mask[None, None], scores, -1000000000.0)
        p = _softmax(scores, axis=-1)
        o = torch.einsum('bhqk,bhkd->bhqd', p, v)
        return (lambda x, *d: x.permute(*d))(o, 0, 2, 1, 3).reshape(B, S, D) @ wo

    def _B_ref(x, w1, b1, w2, b2):
        h = torch.einsum('bsd,df->bsf', x, w1) + b1
        zero = torch.zeros_like(h)
        r = torch.where(h > zero, h, zero)
        h = r * r
        out = torch.einsum('bsf,fd->bsd', h, w2) + b2
        return out
    x = A_x
    mod = (_silu(c) @ w_mod).reshape(c.shape[0], 6, 1, -1)
    sa, ca, ga, sb, cb, gb = (mod[:, 0].clone(), mod[:, 1].clone(), mod[:, 2].clone(), mod[:, 3].clone(), mod[:, 4].clone(), mod[:, 5].clone())
    h = _layernorm(x, axis=-1) * (1 + ca) + sa
    x = x + ga * _A_ref(h, A_wqkv, A_wo)
    h = _layernorm(x, axis=-1) * (1 + cb) + sb
    x = x + gb * _B_ref(h, B_w1, B_b1, B_w2, B_b2)
    return x
```

```python
import re

REG = re.compile(r'\b([vas])\[(\d+):(\d+)\]|\b([vas])(\d+)\b|\b(vcc|exec|m0|scc)\b')

def regs_of(op):
    out = set()
    for m in REG.finditer(op):
        if m.group(1):
            for i in range(int(m.group(2)), int(m.group(3)) + 1):
                out.add((m.group(1), i))
        elif m.group(4):
            out.add((m.group(4), int(m.group(5))))
        else:
            out.add((m.group(6), 0))
    return out

TRANS = ('v_exp_f32', 'v_log_f32', 'v_rcp_f32', 'v_rsq_f32', 'v_sqrt_f32')

class Ins:
    def __init__(self, text):
        self.text = text
        t = text.split(';')[0].strip()
        self.label = t.endswith(':')
        self.mn = t.split()[0] if t else ''
        rest = t[len(self.mn):].strip()
        ops = [o.strip() for o in rest.split(',')] if rest else []
        self.ops = ops
        mn = self.mn
        self.is_mfma = mn.startswith('v_mfma')
        self.is_valu = mn.startswith('v_') and not self.is_mfma
        self.is_dot = mn.startswith('v_dot')
        self.is_trans = mn in TRANS
        self.is_vmem = mn.startswith('buffer_') or mn.startswith('global_')
        self.is_ds = mn.startswith('ds_')
        self.is_salu = mn.startswith('s_')
        self.is_perm = mn.startswith('v_permlane')
        self.w = set(); self.r = set(); self.srcc = set(); self.ab = set()
        self.store_data = set()
        if self.label or not mn:
            return
        R = [regs_of(o) for o in ops]
        allr = set().union(*R) if R else set()
        if self.is_mfma:
            self.w = R[0]; self.ab = R[1] | R[2]; self.srcc = R[3]; self.r = self.ab | self.srcc
        elif self.is_valu:
            if self.is_perm:
                self.w = R[0] | R[1]; self.r = R[0] | R[1]
            else:
                self.w = R[0]; self.r = set().union(*R[1:]) if len(R) > 1 else set()
                if mn.startswith('v_dot2c') or mn.startswith('v_fmac') or mn.startswith('v_writelane'):
                    self.r |= R[0]
                if mn.startswith('v_cndmask') and len(ops) == 3:
                    self.r.add(('vcc', 0))
        elif self.is_vmem:
            if 'store' in mn:
                self.r = allr;
                if 'x4' in mn or 'x3' in mn: self.store_data = R[0]
            elif 'atomic' in mn:
                self.r = allr; self.w = R[0] if 'sc0' in rest else set()
            elif rest.endswith(' lds') or ' lds ' in rest:
                self.r = allr | {('m0', 0)}
            else:
                self.w = R[0]; self.r = set().union(*R[1:])
        elif self.is_ds:
            if 'write' in mn or 'add' in mn:
                self.r = allr
            else:
                self.w = R[0]; self.r = set().union(*R[1:])
        elif self.is_salu:
            if mn.startswith('s_cmp') or mn.startswith('s_cbranch') or mn in ('s_branch','s_waitcnt','s_nop','s_barrier','s_endpgm','s_sleep','s_setprio'):
                self.r = allr
            else:
                self.w = R[0] if R else set(); self.r = set().union(*R[1:]) if len(R) > 1 else set()
                if 'saveexec' in mn: self.w = self.w | {('exec', 0)}
        self.states = 1
        if mn == 's_nop':
            self.states = int(ops[0]) + 1

def need(p, c):
    n = 0
    vw = {x for x in p.w if x[0] in 'va'}
    sw = {x for x in p.w if x[0] in ('s', 'vcc')}
    if p.is_mfma:
        passes = 8 if '32x32x16' in p.mn else 4
        big = 12 if passes == 8 else 8
        if c.is_mfma:
            if vw & c.ab: n = max(n, big)
            if vw & c.srcc and not (c.srcc == p.w and c.mn == p.mn): n = max(n, big - 2)
            if vw & c.w and not (c.srcc == p.w and c.w == p.w): n = max(n, big - 2)
        else:
            if vw & (c.r | c.w): n = max(n, big)
            if p.srcc & c.w: n = max(n, 7 if passes == 8 else 3)
    if p.is_valu:
        if p.is_dot:
            if vw & (c.r | c.w):
                same_c = (c.mn == p.mn and not (vw & set().union(*[regs_of(o) for o in c.ops[1:3]])))
                if not same_c: n = max(n, 3)
        if c.is_mfma and vw & c.r: n = max(n, 2)
        if c.is_perm and vw & c.r: n = max(n, 2)
        if p.is_trans and (c.is_valu or c.is_mfma) and vw & c.r: n = max(n, 1)
        if c.mn in ('v_readfirstlane_b32', 'v_readlane_b32') and vw & c.r: n = max(n, 1)
        if sw:
            if c.is_vmem and sw & c.r: n = max(n, 5)
            if c.is_valu and sw & c.r: n = max(n, 4 if 'lane' in c.mn else 2)
            if c.is_salu and sw & c.r: n = max(n, 1)
        if ('exec', 0) in p.w: n = max(n, 5)
    if p.store_data and (c.is_valu or c.is_mfma or c.is_ds or c.is_vmem) and p.store_data & c.w: n = max(n, 2)
    if p.is_salu and ('m0', 0) in p.w and c.is_vmem and ('m0', 0) in c.r: n = max(n, 1)
    return n

class Asm:
    def __init__(self):
        self.items = []
        self.vm = []
        self.lg = []
        self.n = 0
        self.lab = 0
    def e(self, text):
        self.items.append(text)
    def label(self, name):
        self.items.append(name + ':')
    def newlab(self, p='L'):
        self.lab += 1
        return f'{p}_{self.lab}'
    def tok(self):
        self.n += 1
        return self.n
    def vmem(self, text, count=True):
        self.e(text)
        if count:
            t = self.tok(); self.vm.append(t); return t
    def ds(self, text):
        self.e(text)
        t = self.tok(); self.lg.append(t); return t
    def wait(self, vm=None, lg=None):
        parts = []
        if vm is not None:
            if vm == 'all': k = 0; self.vm = []
            elif vm in self.vm:
                i = self.vm.index(vm); k = len(self.vm) - 1 - i; self.vm = self.vm[i + 1:]
            else: k = None
            if k is not None: parts.append(f'vmcnt({min(k,63)})')
        if lg is not None:
            if lg == 'all': k = 0; self.lg = []
            elif lg in self.lg:
                i = self.lg.index(lg); k = len(self.lg) - 1 - i; self.lg = self.lg[i + 1:]
            else: k = None
            if k is not None: parts.append(f'lgkmcnt({min(k,15)})')
        if parts: self.e('s_waitcnt ' + ' '.join(parts))
    def barrier(self, vm=None):
        self.wait(vm=vm, lg='all')
        self.e('s_barrier')
    def finalize(self):
        out = []
        win = []
        pend = {}
        W = 14
        dead = False
        for text in self.items:
            ins = Ins(text)
            if ins.label:
                name = text.strip()[:-1]
                if dead: win = []
                dead = False
                for snap in pend.pop(name, []):
                    win = win + snap
                out.append(text)
                continue
            if not ins.mn or ins.mn.startswith('.') or ins.mn.startswith(';'):
                out.append(text); continue
            req = 0
            for p, d in win:
                r = need(p, ins) - d
                if r > req: req = r
            while req > 0:
                k = min(req, 8)
                out.append(f'    s_nop {k-1}')
                win = [(p, d + k) for p, d in win]
                req -= k
            out.append('    ' + text)
            win = [(p, d + ins.states) for p, d in win if d + ins.states < W]
            win.append((ins, 0))
            if ins.mn.startswith('s_cbranch') or ins.mn == 's_branch':
                pend.setdefault(ins.ops[0], []).append(list(win))
                if ins.mn == 's_branch': dead = True
            if ins.mn == 's_endpgm': dead = True
        return '\n'.join(out) + '\n'

def v(a, n=1):
    return f'v{a}' if n == 1 else f'v[{a}:{a+n-1}]'
def a_(a, n=1):
    return f'a{a}' if n == 1 else f'a[{a}:{a+n-1}]'
def s(a, n=1):
    return f's{a}' if n == 1 else f's[{a}:{a+n-1}]'
```

```python
import sys
from asmlib import *

NAME = 'adaLN_cond__sliding_block__dense_activation_squared_relu__prompt'
DEBUG_TS = '--ts' in sys.argv

WS_E=0; WS_MOD=0x1000; WS_KVF=0x4000; WS_OF=0x6000; WS_XF=0x8000; WS_FF=0x9000
WS_ST=0x10000; WS_TS=0x40000; WS_KV=0x100000; WS_O=0x500000; WS_X1=0x700000; WS_F=0x900000
WS_SIZE=0x1000000
WQ=0; WM=98304; CS=131072; MP=132096; STX=133120
KVK=98304; KVV=122880; MODT=147456; SPARE=159744
LDS_BYTES=163840
W1P=[65536, 98304, 0]; W1N=[4,6,6]
SX,SWQ,SWO,SW1,SB1,SW2,SB2,SC,SWM,SOUT,SDBG,SWS = [4+4*i for i in range(12)]
KARG = {SX:0,SWQ:8,SWO:16,SW1:32,SB1:40,SW2:48,SB2:56,SC:64,SWM:72,SOUT:80,SDBG:88,SWS:96}
SIZE = {SX:2048*1024,SWQ:512*3072,SWO:512*1024,SW1:512*3584,SB1:3584,SW2:1792*1024,SB2:1024,SC:1024,
        SWM:512*6144,SOUT:2048*1024,SDBG:256,SWS:WS_SIZE}
sW,sRB,sCI,sTAG,sTT,sKH,sTT2,sKQ = 52,53,54,55,56,57,58,59
sT0,sT1,sT2,sT3 = 60,61,62,63
sMASK=64; sSPIN=96; sI0=97; sT4=98; sT5=99
vTID,vL,vL16,vTRL,vH,vTS,vATM = 0,1,2,3,4,5,6
MF='v_mfma_f32_32x32x16_bf16'
SC1=' sc1'

A = Asm()
e = A.e
def srd(x): return s(x,4)

tsn=[0]
def ts(name=''):
    if not DEBUG_TS: return
    e('s_memrealtime s[100:101]'); A.lg=[]; e('s_waitcnt lgkmcnt(0)')
    e(f'v_writelane_b32 v{vTS}, s100, {tsn[0]}')
    sys.stderr.write(f'ts {tsn[0]} {name}\n')
    tsn[0]+=1

def poll(vaddr, vt):
    L=A.newlab('POLL'); D=A.newlab('POLLD')
    A.label(L)
    e(f'buffer_load_dword v{vt}, v{vaddr}, {srd(SWS)}, 0 offen sc1')
    e('s_waitcnt vmcnt(0)')
    e(f'v_cmp_ne_u32 vcc, s{sTAG}, v{vt}')
    e(f's_cbranch_vccz {D}')
    e(f's_cmp_eq_u32 s{sSPIN}, 0')
    e(f's_cbranch_scc1 {D}')
    e(f's_sub_u32 s{sSPIN}, s{sSPIN}, 1')
    e('s_sleep 1')
    e(f's_branch {L}')
    A.label(D)
    A.vm=[]

def flag_store(vaddr, vt):
    e(f'v_mov_b32 v{vt}, s{sTAG}')
    e('s_mov_b64 exec, 1')
    A.vmem(f'buffer_store_dword v{vt}, v{vaddr}, {srd(SWS)}, 0 offen sc1')
    e('s_mov_b64 exec, -1')

def dma(srdn, voff, soff, imm=0):
    o = f' offset:{imm}' if imm else ''
    return A.vmem(f'buffer_load_dwordx4 v{voff}, {srd(srdn)}, s{soff} offen{o} lds')

def unpack(dlo, dhi, src):
    e(f'v_lshlrev_b32 v{dlo}, 16, v{src}')
    e(f'v_and_b32 v{dhi}, 0xffff0000, v{src}')

def tr_frag(dst_fn, base, vaddr, o1, o2):
    A.ds(f'ds_read_b64_tr_b16 {dst_fn(base,2)}, v{vaddr} offset:{o1}')
    return A.ds(f'ds_read_b64_tr_b16 {dst_fn(base+2,2)}, v{vaddr} offset:{o2}')

e('s_cmp_ge_u32 s2, 256')
e('s_cbranch_scc1 END')
for r,o in KARG.items():
    e(f's_load_dwordx2 {s(r,2)}, s[0:1], {o}')
e(f'v_lshrrev_b32 v7, 6, v0')
e(f'v_and_b32 v{vL}, 63, v0')
e(f'v_readfirstlane_b32 s{sW}, v7')
for r in KARG:
    e(f's_mov_b32 s{r+2}, {hex(SIZE[r])}')
    e(f's_mov_b32 s{r+3}, 0x00020000')
e(f's_and_b32 s{sT0}, s2, 7')
e(f's_lshr_b32 s{sT1}, s2, 3')
e(f's_lshr_b32 s{sT2}, s{sT1}, 4')
e(f's_lshl_b32 s{sRB}, s{sT0}, 1')
e(f's_add_u32 s{sRB}, s{sRB}, s{sT2}')
e(f's_and_b32 s{sCI}, s{sT1}, 15')
e(f's_and_b32 s{sTT}, s{sW}, 3')
e(f's_lshr_b32 s{sKH}, s{sW}, 2')
e(f's_and_b32 s{sTT2}, s{sW}, 1')
e(f's_lshr_b32 s{sKQ}, s{sW}, 1')
e(f's_mov_b32 s{sSPIN}, 40000')
e(f'v_lshlrev_b32 v{vL16}, 4, v{vL}')
e(f'v_lshrrev_b32 v{vH}, 5, v{vL}')
e(f'v_mov_b32 v{vTS}, 0')
e(f'v_bfe_u32 v7, v{vL}, 2, 2')
e(f'v_bfe_u32 v8, v{vL}, 4, 1')
e(f'v_and_b32 v9, 3, v{vL}')
e(f'v_lshlrev_b32 v{vTRL}, 6, v7')
e(f'v_lshl_add_u32 v{vTRL}, v8, 5, v{vTRL}')
e(f'v_lshl_add_u32 v{vTRL}, v9, 3, v{vTRL}')
e(f'v_lshrrev_b32 v10, 2, v{vL}')
e(f'v_lshlrev_b32 v9, 4, v9')
e(f's_movk_i32 s{sT0}, 6144')
e(f'v_mad_u32_u24 v11, v10, s{sT0}, v9')
e(f's_movk_i32 s{sT0}, 3072')
e(f'v_mad_u32_u24 v12, v10, s{sT0}, v9')
e(f'v_and_b32 v13, 15, v{vL}')
e(f'v_lshrrev_b32 v14, 4, v{vL}')
e(f'v_lshlrev_b32 v13, 10, v13')
e(f'v_lshl_add_u32 v13, v14, 4, v13')
e(f's_lshl_b32 s{sT0}, s{sRB}, 17')
e(f's_lshl_b32 s{sT1}, s{sTT}, 15')
e(f's_add_u32 s{sT0}, s{sT0}, s{sT1}')
e(f's_lshl_b32 s{sT1}, s{sKH}, 9')
e(f's_add_u32 s{sT0}, s{sT0}, s{sT1}')
e(f's_add_u32 s{sT1}, s{sT0}, 16384')
e(f'v_and_b32 v15, 31, v{vL}')
e(f'v_lshlrev_b32 v15, 2, v15')
e('s_waitcnt lgkmcnt(0)')
e(f's_load_dword s{sTAG}, {s(SWS,2)}, 0')
ts('start')
e('s_cmp_ge_u32 s2, 96')
e('s_cbranch_scc1 NOPROD1')
e(f's_lshl_b32 s{sT2}, s{sW}, 7')
tC = A.vmem(f'buffer_load_dword v176, v15, {srd(SC)}, s{sT2} offen')
e(f's_mul_i32 s{sT2}, s{sW}, {64*6144}')
e(f's_lshl_b32 s{sT3}, s2, 6')
e(f's_add_u32 s{sT2}, s{sT2}, s{sT3}')
e(f's_lshl_b32 s{sT3}, s{sW}, 12')
e(f's_add_u32 m0, s{sT3}, {WM}')
for j in range(4):
    if j:
        e('s_add_u32 m0, m0, 1024')
        e(f's_add_u32 s{sT2}, s{sT2}, {16*6144}')
    else:
        e('s_nop 0')
    tWM = dma(SWM, 11, sT2)
A.label('NOPROD1')
X=24
tX=[]
for j in range(8):
    A.vmem(f'buffer_load_dwordx4 {v(X+8*j,4)}, v13, {srd(SX)}, s{sT0} offen offset:{64*j}')
    tX.append(A.vmem(f'buffer_load_dwordx4 {v(X+8*j+4,4)}, v13, {srd(SX)}, s{sT1} offen offset:{64*j}'))
e(f's_mul_i32 s{sT2}, s{sW}, {64*3072}')
e(f's_lshl_b32 s{sT3}, s{sCI}, 6')
e(f's_add_u32 s{sT2}, s{sT2}, s{sT3}')
e(f's_mul_i32 m0, s{sW}, {4*3072}')
for j in range(4):
    if j:
        e('s_add_u32 m0, m0, 3072')
        e(f's_add_u32 s{sT2}, s{sT2}, {16*3072}')
    else:
        e('s_nop 0')
    for img in range(3):
        tWQ = dma(SWQ, 12, sT2, img*1024)
e('s_waitcnt lgkmcnt(0)')
e(f's_mul_i32 s{sTAG}, s{sTAG}, 0x9E3779B1')
e(f's_add_u32 s{sTAG}, s{sTAG}, 0x7F4A7C15')

e('s_cmp_ge_u32 s2, 96')
e('s_cbranch_scc1 NOPROD2')
save_vm = list(A.vm)
A.wait(vm=tC)
unpack(177,178,176)
for r in (177,178):
    e(f'v_mul_f32 v{r+2}, 0xbfb8aa3b, v{r}')
for r in (177,178):
    e(f'v_exp_f32 v{r+2}, v{r+2}')
for r in (177,178):
    e(f'v_add_f32 v{r+2}, 1.0, v{r+2}')
for r in (177,178):
    e(f'v_rcp_f32 v{r+2}, v{r+2}')
for r in (177,178):
    e(f'v_mul_f32 v{r}, v{r}, v{r+2}')
e('v_cvt_pk_bf16_f32 v176, v177, v178')
e(f's_lshl_b32 s{sT2}, s{sW}, 7')
e(f's_add_u32 s{sT3}, s{sT2}, {CS}')
e(f'v_add_u32 v177, s{sT3}, v15')
A.ds('ds_write_b32 v177, v176')
e(f'v_lshl_add_u32 v178, v{vH}, 4, s{sT3}')
A.wait(lg='all')
for ss in range(4):
    A.ds(f'ds_read_b128 {v(136+4*ss,4)}, v178 offset:{32*ss}')
e(f's_lshl_b32 s{sT3}, s{sW}, 12')
e(f's_add_u32 s{sT3}, s{sT3}, {WM}')
e(f'v_lshl_add_u32 v179, v{vH}, 9, v{vTRL}')
e(f'v_add_u32 v179, s{sT3}, v179')
A.wait(vm=tWM)
for ss in range(4):
    tr_frag(a_, 4*ss, 179, 1024*ss, 1024*ss+256)
A.wait(lg='all')
for ss in range(4):
    e(f'{MF} {v(88,16)}, {v(136+4*ss,4)}, {a_(4*ss,4)}, ' + ('0' if ss==0 else v(88,16)))
e(f'v_add_u32 v177, {MP-CS}, v177')
A.ds('ds_write_b32 v177, v88')
A.barrier()
e(f's_cmp_lg_u32 s{sW}, 0')
e('s_cbranch_scc1 NOPROD2')
e(f'v_and_b32 v177, 15, v{vL}')
e(f'v_lshlrev_b32 v177, 3, v177')
e(f'v_add_u32 v178, {MP}, v177')
for ww in range(8):
    A.ds(f'ds_read_b64 {v(136+2*ww,2)}, v178 offset:{128*ww}')
A.wait(lg='all')
for st in (8,4,2):
    for i in range(st):
        e(f'v_add_f32 v{136+i}, v{136+i}, v{136+st+i}')
e('v_cvt_pk_bf16_f32 v136, v136, v137')
e(f'v_mov_b32 v137, s{sTAG}')
e(f's_lshl_b32 s{sT2}, s2, 7')
e(f's_add_u32 s{sT2}, s{sT2}, {WS_MOD}')
e('s_mov_b64 exec, 0xffff')
A.vmem(f'buffer_store_dwordx2 v[136:137], v177, {srd(SWS)}, s{sT2} offen sc1', count=False)
e('s_mov_b64 exec, -1')
A.label('NOPROD2')
A.vm = save_vm
ts('modpub')

e(f's_mov_b32 s{sT4}, 0x3f803f80')
for i in range(8):
    e(f'v_mov_b32 v{176+i}, 0')
for j in range(8):
    A.wait(vm=tX[j])
    for i in range(4):
        e(f'v_permlane16_swap_b32 v{X+8*j+i}, v{X+8*j+4+i}')
    for i in range(8):
        r=X+8*j+i
        e(f'v_dot2c_f32_bf16 v{176+(i&3)}, s{sT4}, v{r}')
        e(f'v_dot2c_f32_bf16 v{180+(i&3)}, v{r}, v{r}')
def half_sum(r, t):
    e(f'v_mov_b32 v{t}, v{r}')
    e(f'v_permlane32_swap_b32 v{t}, v{r}')
    e(f'v_add_f32 v{r}, v{r}, v{t}')
for b in (176,180):
    e(f'v_add_f32 v{b}, v{b}, v{b+1}')
    e(f'v_add_f32 v{b+2}, v{b+2}, v{b+3}')
for b in (176,180):
    e(f'v_add_f32 v{b}, v{b}, v{b+2}')
e('v_mov_b32 v177, v180')
half_sum(176,178); half_sum(177,179)
e(f'v_lshlrev_b32 v178, 1, v15')
e(f's_lshl_b32 s{sT2}, s{sW}, 8')
e(f's_add_u32 s{sT3}, s{sT2}, {STX}')
e(f'v_add_u32 v179, s{sT3}, v178')
A.ds('ds_write_b64 v179, v[176:177]')
e(f's_xor_b32 s{sT2}, s{sT2}, 1024')
e(f's_add_u32 s{sT3}, s{sT2}, {STX}')
e(f'v_add_u32 v179, s{sT3}, v178')
A.barrier()
A.ds('ds_read_b64 v[180:181], v179')
A.wait(lg='all')
def ln_finish(sum_r, sq_r, rs, nmr, t):
    e(f'v_mul_f32 v{sum_r}, 0x3b000000, v{sum_r}')
    e(f'v_mul_f32 v{sq_r}, 0x3b000000, v{sq_r}')
    e(f'v_fma_f32 v{t}, -v{sum_r}, v{sum_r}, v{sq_r}')
    e(f'v_max_f32 v{t}, 0, v{t}')
    e(f'v_add_f32 v{t}, 0x3727c5ac, v{t}')
    e(f'v_rsq_f32 v{rs}, v{t}')
    e(f'v_mul_f32 v{nmr}, -v{sum_r}, v{rs}' if False else f'v_mul_f32_e64 v{nmr}, -v{sum_r}, v{rs}')
e('v_add_f32 v176, v176, v180')
e('v_add_f32 v177, v177, v181')
ln_finish(176,177,7,8,178)
for i in range(0,64,4):
    for k in range(4):
        unpack(168+2*k,169+2*k,X+i+k)
    for k in range(8):
        e(f'v_fma_f32 v{168+k}, v{168+k}, v7, v8')
    for k in range(4):
        e(f'v_cvt_pk_bf16_f32 v{X+i+k}, v{168+2*k}, v{169+2*k}')
ts('xhat')

def mod_gather(voff, nload, dreg, treg, one_chunks):
    L=A.newlab('MG'); D=A.newlab('MGD')
    A.label(L)
    for i in range(nload):
        e(f'buffer_load_dwordx4 {v(dreg+4*i,4)}, v{voff}, {srd(SWS)}, s{sT5} offen offset:{0}' .replace('offset:0', f'offset:0') + ' sc1' if i==0 else
          f'buffer_load_dwordx4 {v(dreg+4*i,4)}, v{voff}, {srd(SWS)}, s{sT4} offen sc1')
    e('s_waitcnt vmcnt(0)')
    e(f'v_cmp_ne_u32 vcc, s{sTAG}, v{dreg+1}')
    for r in [dreg+3] + ([dreg+5,dreg+7] if nload>1 else []):
        e(f'v_cmp_ne_u32 {s(sT2,2)}, s{sTAG}, v{r}')
        e(f's_or_b64 vcc, vcc, {s(sT2,2)}')
    e(f's_cbranch_vccz {D}')
    e(f's_cmp_eq_u32 s{sSPIN}, 0')
    e(f's_cbranch_scc1 {D}')
    e(f's_sub_u32 s{sSPIN}, s{sSPIN}, 1')
    e('s_sleep 1')
    e(f's_branch {L}')
    A.label(D)
    A.vm=[]

e(f's_cmp_ge_u32 s{sW}, 4')
e('s_cbranch_scc1 NOG1')
e('v_lshlrev_b32 v176, 4, v0')
e(f's_mov_b32 s{sT5}, {WS_MOD}')
mod_gather(176,1,180,0,None)
unpack(184,185,180); unpack(186,187,182)
e(f's_cmp_ge_u32 s{sW}, 2')
e(f's_cselect_b32 s{sT2}, 1.0, 0')
for i in range(4):
    e(f'v_add_f32 v{184+i}, s{sT2}, v{184+i}')
e(f'v_add_u32 v176, {MODT}, v176')
A.ds('ds_write_b128 v176, v[184:187]')
A.label('NOG1')
A.vm=[1]
A.barrier(vm='all')
ts('modrdy')

accK,accV,accQ=88,104,120
GS=[136,152]; T=168
e(f's_mul_i32 s{sT2}, s{sKH}, 49152')
e(f's_movk_i32 s{sT3}, 3072')
e(f'v_mad_u32_u24 v9, v{vH}, s{sT3}, v{vTRL}')
e(f'v_add_u32 v9, s{sT2}, v9')
e(f's_lshl_b32 s{sT2}, s{sKH}, 10')
e(f's_add_u32 s{sT2}, s{sT2}, {MODT}')
e(f'v_lshl_add_u32 v10, v{vH}, 6, s{sT2}')

def gs_read(buf, off_s, off_g, d2):
    b=GS[buf]
    A.ds(f'ds_read_b128 {v(b,4)}, v10 offset:{off_g}')
    A.ds(f'ds_read_b128 {v(b+4,4)}, v10 offset:{off_g+d2}')
    A.ds(f'ds_read_b128 {v(b+8,4)}, v10 offset:{off_s}')
    return A.ds(f'ds_read_b128 {v(b+12,4)}, v10 offset:{off_s+d2}')
def p1_gs(ss):
    o=(ss>>1)*128+(ss&1)*32
    return gs_read(ss&1, o, o+2048, 16)
def p1_w(ss, img, areg):
    o=(ss>>1)*6144+img*1024+(ss&1)*512
    return tr_frag(a_, areg, 9, o, o+256)
def norm_ops(ss, full, Tb=T):
    b=GS[ss&1]; x=X+4*ss; ops=[]
    for k in range(4):
        ops.append(f'v_lshlrev_b32 v{Tb+2*k}, 16, v{x+k}')
        ops.append(f'v_and_b32 v{Tb+2*k+1}, 0xffff0000, v{x+k}')
    if full:
        for k in range(8): ops.append(f'v_fma_f32 v{Tb+k}, v{Tb+k}, v7, v8')
    for k in range(8): ops.append(f'v_fma_f32 v{Tb+k}, v{Tb+k}, v{b+k}, v{b+8+k}')
    for k in range(4): ops.append(f'v_cvt_pk_bf16_f32 v{x+k}, v{Tb+2*k}, v{Tb+2*k+1}')
    return ops
def interleave(mf, ops):
    n=len(mf); per=(len(ops)+n-1)//n
    for i,m in enumerate(mf):
        e(m)
        for o in ops[i*per:(i+1)*per]: e(o)

tg={}; tw={}
tg[0]=p1_gs(0); tg[1]=p1_gs(1)
for ss in (0,1):
    p1_w(ss,1,8*(ss%4)); tw[ss]=p1_w(ss,2,8*(ss%4)+4)
A.wait(lg=tg[0])
for o in norm_ops(0,False): e(o)
for ss in range(16):
    if ss+2<16:
        tg[ss+2]=p1_gs(ss+2)
        p1_w(ss+2,1,8*((ss+2)%4)); tw[ss+2]=p1_w(ss+2,2,8*((ss+2)%4)+4)
    A.wait(lg=tw[ss+1] if ss+1<16 else tw[ss])
    ar=8*(ss%4); x=X+4*ss
    mf=[f'{MF} {v(accK,16)}, {a_(ar,4)}, {v(x,4)}, '+('0' if ss==0 else v(accK,16)),
        f'{MF} {v(accV,16)}, {v(x,4)}, {a_(ar+4,4)}, '+('0' if ss==0 else v(accV,16))]
    interleave(mf, norm_ops(ss+1,False) if ss+1<16 else [])
tq={}
for ss in range(4): tq[ss]=p1_w(ss,0,4*ss)
e(f's_lshl_b32 s{sT2}, s{sTT}, 12')
e(f'v_add_u32 v11, s{sT2}, v{vL16}')
e(f's_cmp_eq_u32 s{sKH}, 0')
e(f's_cselect_b32 s{sT2}, {KVV-KVK}, 0')
e(f's_cselect_b32 s{sT3}, 0, {KVV-KVK}')
e(f's_addk_i32 s{sT2}, 0') if False else None
e(f'v_add_u32 v11, {KVK}, v11')
e(f'v_add_u32 v12, s{sT2}, v11')
e(f'v_add_u32 v11, s{sT3}, v11')
e('s_cbranch_scc1 KVR0')
for q in range(4): A.ds(f'ds_write_b128 v12, {v(accK+4*q,4)} offset:{1024*q}')
for i in range(16): e(f'v_mov_b32 v{accK+i}, v{accV+i}')
e('s_branch KVR1')
A.label('KVR0')
for q in range(4): e(f'ds_write_b128 v12, {v(accV+4*q,4)} offset:{1024*q}')
A.label('KVR1')
A.barrier()
for q in range(4): A.ds(f'ds_read_b128 {v(accV+4*q,4)}, v11 offset:{1024*q}')
e(f's_lshl_b32 s{sT2}, s{sRB}, 4')
e(f's_add_u32 s{sT2}, s{sT2}, s{sCI}')
e(f's_lshl_b32 s{sT4}, s{sT2}, 14')
e(f's_lshl_b32 s{sT5}, s{sKH}, 13')
e(f's_add_u32 s{sT4}, s{sT4}, s{sT5}')
e(f's_lshl_b32 s{sT5}, s{sTT}, 11')
e(f's_add_u32 s{sT4}, s{sT4}, s{sT5}')
e(f's_add_u32 s{sT4}, s{sT4}, {WS_KV}')
e(f's_add_u32 s{sT3}, s{sT3}, s{sT5}')
e(f's_add_u32 s{sT3}, s{sT3}, {KVK}')
e(f'v_add_u32 v12, s{sT3}, v{vL16}')
A.wait(lg='all')
for i in range(16): e(f'v_add_f32 v{accK+i}, v{accK+i}, v{accV+i}')
for i in range(8): e(f'v_cvt_pk_bf16_f32 v{accV+i}, v{accK+2*i}, v{accK+2*i+1}')
for i in range(2):
    tKV=A.vmem(f'buffer_store_dwordx4 {v(accV+4*i,4)}, v{vL16}, {srd(SWS)}, s{sT4} offen offset:{1024*i}{SC1}')
for i in range(2):
    A.ds(f'ds_write_b128 v12, {v(accV+4*i,4)} offset:{16384+1024*i}')
ts('kvdone')
for ss in range(16):
    A.wait(lg=tq.get(ss))
    e(f'{MF} {v(accQ,16)}, {a_(4*(ss%8),4)}, {v(X+4*ss,4)}, '+('0' if ss==0 else v(accQ,16)))
    if ss+4<16: tq[ss+4]=p1_w(ss+4,0,4*((ss+4)%8))
e(f's_mul_i32 s{sT3}, s{sW}, 3072')
e(f'v_add_u32 v11, s{sT3}, v{vL16}')
e(f's_xor_b32 s{sT3}, s{sW}, 4')
e(f's_mul_i32 s{sT3}, s{sT3}, 3072')
e(f'v_add_u32 v13, s{sT3}, v{vL16}')
e(f's_cmp_eq_u32 s{sKH}, 0')
e('s_cbranch_scc1 QR0')
for q in range(2): A.ds(f'ds_write_b128 v11, {v(accQ+4*q,4)} offset:{1024+1024*q}')
for i in range(8): e(f'v_mov_b32 v{accQ+i}, v{accQ+8+i}')
e('s_branch QR1')
A.label('QR0')
for q in range(2): e(f'ds_write_b128 v11, {v(accQ+8+4*q,4)} offset:{1024+1024*q}')
A.label('QR1')
e(f's_lshl_b32 s{sT3}, s{sT2}, 5')
e(f's_lshl_b32 s{sT5}, s{sW}, 2')
e(f's_add_u32 s{sT3}, s{sT3}, s{sT5}')
e(f's_add_u32 s{sT3}, s{sT3}, {WS_KVF}')
e(f'v_mov_b32 v14, s{sT3}')
A.wait(vm='all')
flag_store(14,15)
A.barrier()
for q in range(2): A.ds(f'ds_read_b128 {v(accQ+8+4*q,4)}, v13 offset:{1024+1024*q}')
A.wait(lg='all')
QF=24
e(f's_mov_b32 s{sT5}, 0x3eb8aa3b')
for i in range(8): e(f'v_add_f32 v{accQ+i}, v{accQ+i}, v{accQ+8+i}')
for i in range(8): e(f'v_mul_f32 v{accQ+i}, s{sT5}, v{accQ+i}')
for i in range(4): e(f'v_cvt_pk_bf16_f32 v{QF+i}, v{accQ+2*i}, v{accQ+2*i+1}')
ts('qdone')
HB=64
for b in range(2):
    back=2-b
    Lz=A.newlab('HZ'); Ld=A.newlab('HD')
    e(f's_cmp_lt_u32 s{sRB}, {back}')
    e(f's_cbranch_scc1 {Lz}')
    e(f'v_subrev_u32 v15, {back*16*32}, v14')
    poll(15, 13)
    e(f's_sub_u32 s{sT5}, s{sT4}, {back*16*16384}')
    for i in range(2):
        e(f'buffer_load_dwordx4 {v(HB+8*b+4*i,4)}, v{vL16}, {srd(SWS)}, s{sT5} offen offset:{1024*i}{SC1}')
    e(f's_branch {Ld}')
    A.label(Lz)
    for i in range(8): e(f'v_mov_b32 v{HB+8*b+i}, 0')
    A.label(Ld)
e(f's_cmp_lt_u32 s{sW}, 4')
e('s_cbranch_scc1 NOG2')
e('v_lshlrev_b32 v80, 4, v0')
e(f's_mov_b32 s{sT5}, {WS_MOD}')
e(f's_mov_b32 s{sT4}, {WS_MOD+4096}')
mod_gather(80,2,84,0,None)
unpack(92,93,84); unpack(94,95,86); unpack(96,97,88); unpack(98,99,90)
e(f's_cmp_lt_u32 s{sW}, 6')
e(f's_cselect_b32 s{sT2}, 1.0, 0')
for i in range(4): e(f'v_add_f32 v{96+i}, s{sT2}, v{96+i}')
e(f'v_add_u32 v80, {MODT}, v80')
A.ds('ds_write_b128 v80, v[92:95]')
A.ds('ds_write_b128 v80, v[96:99] offset:4096')
A.label('NOG2')
A.vm=[1]; A.wait(vm='all')
for b in range(2):
    for i in range(2):
        A.ds(f'ds_write_b128 v12, {v(HB+8*b+4*i,4)} offset:{8192*b+1024*i}')
MD=16
e(f'v_and_b32 v13, 31, v{vL}')
e(f'v_lshlrev_b32 v15, 2, v{vH}')
e('v_sub_u32 v13, v13, v15')
for r in range(16):
    e(f'v_cmp_le_i32 {s(sMASK+2*r,2)}, {8*(r>>2)+(r&3)}, v13')
e('v_mov_b32 v13, 0xffff')
e('v_mov_b32 v15, 0xffff0000')
for i in range(8):
    e(f'v_cndmask_b32 v{MD+i}, 0, v13, {s(sMASK+4*i,2)}')
    e(f'v_cndmask_b32 v7, 0, v15, {s(sMASK+4*i+2,2)}')
    e(f'v_or_b32 v{MD+i}, v{MD+i}, v7')
VB=168
for i in range(24): e(f'v_mov_b32 v{VB+i}, 0x3f803f80')
e(f's_lshl_b32 s{sT2}, s{sRB}, 2')
e(f's_add_u32 s{sT2}, s{sT2}, s{sTT}')
e(f's_sub_i32 s{sI0}, 8, s{sT2}')
A.barrier()
ts('halo')
e(f's_cmp_lg_u32 s{sW}, 7')
e('s_cbranch_scc1 NOATM')
e(f'v_mov_b32 v{vATM}, 1')
e('s_mov_b64 exec, 1')
e(f'buffer_atomic_add v{vATM}, off, {srd(SDBG)}, 0 sc0 sc1')
e('s_mov_b64 exec, -1')
A.label('NOATM')
def pat128(dst, t1, t2):
    e(f'v_bfe_u32 v{t1}, v{vL}, 2, 2')
    e(f'v_lshl_add_u32 v{t1}, v{vH}, 2, v{t1}')
    e(f'v_lshlrev_b32 v{dst}, 10, v{t1}')
    e(f'v_bfe_u32 v{t1}, v{vL}, 4, 1')
    e(f'v_lshl_add_u32 v{dst}, v{t1}, 6, v{dst}')
    e(f'v_and_b32 v{t1}, 3, v{vL}')
    e(f'v_lshl_add_u32 v{dst}, v{t1}, 4, v{dst}')
def pat256(dst, t1, t2):
    e(f'v_bfe_u32 v{t1}, v{vL}, 2, 2')
    e(f's_movk_i32 s{sT2}, 3584')
    e(f'v_mul_u32_u24 v{dst}, s{sT2}, v{t1}')
    e(f'v_lshrrev_b32 v{t1}, 4, v{vL}')
    e(f'v_lshl_add_u32 v{dst}, v{t1}, 6, v{dst}')
    e(f'v_and_b32 v{t1}, 3, v{vL}')
    e(f'v_lshl_add_u32 v{dst}, v{t1}, 4, v{dst}')
pat128(7,13,15)
e(f's_lshl_b32 s{sT2}, s{sW}, 16')
e(f's_and_b32 s{sT3}, s{sCI}, 7')
e(f's_lshl_b32 s{sT3}, s{sT3}, 7')
e(f's_add_u32 s{sT2}, s{sT2}, s{sT3}')
e(f's_lshl_b32 m0, s{sW}, 13')
for j in range(8):
    if j:
        e('s_add_u32 m0, m0, 1024')
        e(f's_add_u32 s{sT2}, s{sT2}, 8192')
    else: e('s_nop 0')
    dma(SWO, 7, sT2)
def w1_dma(part, vo):
    n=W1N[part]; k0=sum(W1N[:part])
    e(f's_mul_i32 s{sT2}, s{sKH}, {256*3584}')
    e(f's_mul_i32 s{sT3}, s{sTT}, {n*4*3584}')
    e(f's_add_u32 s{sT2}, s{sT2}, s{sT3}')
    e(f's_lshl_b32 s{sT3}, s{sCI}, 8')
    e(f's_add_u32 s{sT2}, s{sT2}, s{sT3}')
    if k0: e(f's_add_u32 s{sT2}, s{sT2}, {k0*16*3584}')
    e(f's_mul_i32 s{sT3}, s{sW}, {n*1024}')
    e(f's_add_u32 m0, s{sT3}, {W1P[part]}')
    t=None
    for j in range(n):
        if j:
            e('s_add_u32 m0, m0, 1024')
            e(f's_add_u32 s{sT2}, s{sT2}, {4*3584}')
        else: e('s_nop 0')
        t=A.vmem(f'buffer_load_dwordx4 v{vo}, {srd(SW1)}, s{sT2} offen lds', count=False)
e(f's_cmp_ge_u32 s{sCI}, 14')
e('s_cbranch_scc1 NOW1A')
pat256(8,13,15)
w1_dma(0,8)
A.label('NOW1A')

KF=28; SBF=[64,80,96]; NEGM=112; OA=128; PB=[144,152]; PO=160
e(f's_lshl_b32 s{sT2}, s{sTT}, 11')
e(f's_lshl_b32 s{sT3}, s{sKH}, 10')
e(f's_add_u32 s{sT3}, s{sT3}, s{sT2}')
e(f's_add_u32 s{sT3}, s{sT3}, {KVK}')
e(f'v_add_u32 v9, s{sT3}, v{vL16}')
e(f'v_and_b32 v10, 47, v{vL}')
e(f's_lshl_b32 s{sT3}, s{sKH}, 8')
e(f's_add_u32 s{sT3}, s{sT3}, s{sT2}')
e(f's_add_u32 s{sT3}, s{sT3}, {KVV}')
e(f'v_lshl_add_u32 v10, v10, 4, s{sT3}')
order=[8,0,7,6,5,4,3,2,1]
tk={}
for n,i in enumerate(order):
    tk[i]=A.ds(f'ds_read_b128 {v(KF+4*n,4)}, v9 offset:{2048*i}')
kf={i:KF+4*n for n,i in enumerate(order)}
e(f's_mov_b32 s{sT2}, 0xffff')
e(f's_mov_b32 s{sT3}, 0xffff')
tv={}
def v_read(n):
    i=order[n]
    e(f's_mov_b64 exec, {s(sT2,2)}')
    A.ds(f'ds_read_b128 {v(VB+8*(n%3),4)}, v10 offset:{2048*i}')
    tv[n]=A.ds(f'ds_read_b128 {v(VB+8*(n%3)+4,4)}, v10 offset:{2048*i+1024}')
    e('s_mov_b64 exec, -1')
for n in range(3): v_read(n)
e('v_mov_b32 v11, 0xf149f2ca')
def smf(n, c):
    i=order[n]
    A.wait(lg=tk[i])
    e(f'{MF} {v(SBF[n%3],16)}, {v(kf[i],4)}, {v(QF,4)}, {c}')
def merge(tag):
    La=A.newlab('MGA'); Lb=A.newlab('MGB')
    e(f's_cmp_lt_u32 s{sRB}, 2')
    e(f's_cbranch_scc1 {La}')
    for r in range(16): e(f'v_cndmask_b32 v{SBF[0]+r}, v{SBF[1]+r}, v{SBF[0]+r}, {s(sMASK+2*r,2)}')
    e(f's_branch {Lb}')
    A.label(La)
    for r in range(16): e(f'v_cndmask_b32 v{SBF[0]+r}, v11, v{SBF[0]+r}, {s(sMASK+2*r,2)}')
    A.label(Lb)
M=12
def maxes(b, first):
    if first:
        e(f'v_max3_f32 v{M}, v{b}, v{b+1}, v{b+2}')
        e(f'v_max3_f32 v{M+1}, v{b+3}, v{b+4}, v{b+5}')
        rest=list(range(6,16,2))
    else: rest=list(range(0,16,2))
    for k,r in enumerate(rest):
        m=M+(k&1)
        e(f'v_max3_f32 v{m}, v{m}, v{b+r}, v{b+r+1}')
for n in range(3): smf(n,'0')
merge(1)
smf(4,'0')
maxes(SBF[0],True)
smf(3,'0')
issued={0,1,2,3,4}
for n in range(2,9):
    e(f's_cmp_gt_i32 s{sI0}, {order[n]}')
    e('s_cbranch_scc1 P1X')
    maxes(SBF[n%3],False)
    if n+3<9 and n+3 not in issued: smf(n+3,'0'); issued.add(n+3)
A.label('P1X')
e(f'v_max_f32 v{M}, v{M}, v{M+1}')
e(f'v_mov_b32 v{M+1}, v{M}')
e(f'v_permlane32_swap_b32 v{M}, v{M+1}')
e(f'v_max_f32 v{M}, v{M}, v{M+1}')
for r in range(16): e(f'v_sub_f32 v{NEGM+r}, 0, v{M}')
A.wait(lg='all')
C=v(NEGM,16)
for n in range(3): smf(n,C)
merge(2)
smf(4,C)
def softp(b, p):
    for r in range(0,16,4):
        for k in range(4): e(f'v_exp_f32 v{b+r+k}, v{b+r+k}')
        if r:
            for k in (0,1): e(f'v_cvt_pk_bf16_f32 v{p+(r-4)//2+k}, v{b+r-4+2*k}, v{b+r-3+2*k}')
    for k in (0,1): e(f'v_cvt_pk_bf16_f32 v{p+6+k}, v{b+12+2*k}, v{b+13+2*k}')
def pv(n, p, first=False):
    A.wait(lg=tv[n])
    vb=VB+8*(n%3)
    e(f'{MF} {v(OA,16)}, {v(vb,4)}, {v(p,4)}, '+('0' if first else v(OA,16)))
    e(f'{MF} {v(OA,16)}, {v(vb+4,4)}, {v(p+4,4)}, {v(OA,16)}')
softp(SBF[0],PB[0])
smf(3,C)
for i in range(8):
    e(f'v_bfi_b32 v{PO+i}, v{MD+i}, 0, v{PB[0]+i}')
    e(f'v_and_b32 v{PB[0]+i}, v{MD+i}, v{PB[0]+i}')
pv(0,PB[0],True); v_read(3)
pv(1,PO); v_read(4)
issued={0,1,2,3,4}
for n in range(2,9):
    e(f's_cmp_gt_i32 s{sI0}, {order[n]}')
    e('s_cbranch_scc1 P2X')
    p=PB[(n+1)%2]
    softp(SBF[n%3],p)
    if n+3<9 and n+3 not in issued: smf(n+3,C); issued.add(n+3)
    pv(n,p)
    if n+3<9 and n+3 not in tv: v_read(n+3)
A.label('P2X')
A.lg=[1]; A.wait(lg='all')
e(f'v_rcp_f32 v{M}, v{OA+8}')
for i in range(8): e(f'v_mul_f32 v{OA+i}, v{M}, v{OA+i}')
for i in range(4): e(f'v_cvt_pk_bf16_f32 v{OA+8+i}, v{OA+2*i}, v{OA+2*i+1}')
e(f's_lshl_b32 s{sT2}, s{sRB}, 2')
e(f's_add_u32 s{sT2}, s{sT2}, s{sTT}')
e(f's_lshl_b32 s{sT2}, s{sT2}, 5')
e(f's_lshl_b32 s{sT3}, s{sCI}, 1')
e(f's_add_u32 s{sT2}, s{sT2}, s{sT3}')
e(f's_add_u32 s{sT2}, s{sT2}, s{sKH}')
e(f's_lshl_b32 s{sT3}, s{sT2}, 10')
e(f's_add_u32 s{sT3}, s{sT3}, {WS_O}')
A.vm=[]
tO=A.vmem(f'buffer_store_dwordx4 {v(OA+8,4)}, v{vL16}, {srd(SWS)}, s{sT3} offen{SC1}')
e(f's_lshl_b32 s{sT2}, s{sT2}, 2')
e(f's_add_u32 s{sT2}, s{sT2}, {WS_OF}')
e(f'v_mov_b32 v14, s{sT2}')
ts('attn')
A.wait(vm='all')
flag_store(14,15)
A.barrier()
e(f's_cmp_ge_u32 s{sCI}, 14')
e('s_cbranch_scc1 NOW1B')
w1_dma(1,8)
A.label('NOW1B')
sROW, sCOL = 64, 65
e(f's_lshr_b32 s{sT2}, s{sCI}, 3')
e(f's_lshl_b32 s{sT2}, s{sT2}, 1')
e(f's_add_u32 s{sT2}, s{sT2}, s{sTT2}')
e(f's_lshl_b32 s{sT3}, s{sRB}, 2')
e(f's_add_u32 s{sROW}, s{sT2}, s{sT3}')
e(f's_and_b32 s{sT2}, s{sCI}, 7')
e(f's_lshl_b32 s{sT2}, s{sT2}, 2')
e(f's_add_u32 s{sCOL}, s{sT2}, s{sKQ}')
e(f'v_and_b32 v13, 31, v{vL}')
e(f'v_lshlrev_b32 v13, 10, v13')
e(f'v_lshl_add_u32 v13, v{vH}, 3, v13')
e(f's_lshl_b32 s{sT2}, s{sROW}, 15')
e(f's_lshl_b32 s{sT3}, s{sCOL}, 5')
e(f's_add_u32 s66, s{sT2}, s{sT3}')
A.vmem(f'buffer_load_dwordx2 v[16:17], v13, {srd(SX)}, s66 offen')
A.vmem(f'buffer_load_dwordx2 v[18:19], v13, {srd(SX)}, s66 offen offset:16')
e(f'v_lshlrev_b32 v15, 3, v{vH}')
A.vmem(f'buffer_load_dwordx2 v[20:21], v15, {srd(SB2)}, s{sT3} offen')
A.vmem(f'buffer_load_dwordx2 v[22:23], v15, {srd(SB2)}, s{sT3} offen offset:16')

e(f's_lshl_b32 s{sT2}, s{sROW}, 5')
e(f's_lshl_b32 s{sT3}, s{sKQ}, 3')
e(f's_add_u32 s{sT2}, s{sT2}, s{sT3}')
e(f's_lshl_b32 s{sT3}, s{sT2}, 2')
e(f's_add_u32 s{sT3}, s{sT3}, {WS_OF}')
e(f'v_and_b32 v14, 7, v{vL}')
e(f'v_lshl_add_u32 v14, v14, 2, s{sT3}')
e(f's_lshl_b32 s{sT2}, s{sT2}, 10')
e(f's_add_u32 s{sT2}, s{sT2}, {WS_O}')
e(f's_add_u32 s{sT3}, s{sT2}, 4096')
e(f's_lshl_b32 s{sT4}, s{sKQ}, 14')
e(f'v_lshl_add_u32 v9, v{vH}, 9, v{vTRL}')
e(f'v_add_u32 v9, s{sT4}, v9')
AF=24; ACC=56; RED=88
tw={}
def w2c(ss, slot_off, ring, vaddr=9):
    tr_frag(a_, ring, vaddr, slot_off, slot_off+1024)
    return tr_frag(a_, ring+4, vaddr, slot_off+256, slot_off+256+1024)
for ss in range(3): tw[ss]=w2c(ss, ss*2048, 8*ss)
poll(14,15)
ts('oflag')
ta={}
for ss in range(8):
    ta[ss]=A.vmem(f'buffer_load_dwordx4 {v(AF+4*ss,4)}, v{vL16}, {srd(SWS)}, s{sT2 if ss<4 else sT3} offen offset:{1024*(ss&3)}{SC1}')
for ss in range(8):
    if ss+3<8: tw[ss+3]=w2c(ss+3,(ss+3)*2048, 8*((ss+3)%4))
    A.wait(vm=ta[ss], lg=tw[ss])
    for c in range(2):
        e(f'{MF} {v(ACC+16*c,16)}, {a_(8*(ss%4)+4*c,4)}, {v(AF+4*ss,4)}, '+('0' if ss==0 else v(ACC+16*c,16)))
def reduce4(region_stride, acc, red):
    A.barrier()
    e(f's_mul_i32 s{sT2}, s{sKQ}, {region_stride}')
    e(f's_lshl_b32 s{sT3}, s{sTT2}, 13')
    e(f's_add_u32 s{sT2}, s{sT2}, s{sT3}')
    e(f'v_add_u32 v10, s{sT2}, v{vL16}')
    for q in range(8): A.ds(f'ds_write_b128 v10, {v(acc+4*q,4)} offset:{1024*q}')
    e(f's_lshl_b32 s{sT2}, s{sKQ}, 11')
    e(f's_add_u32 s{sT2}, s{sT2}, s{sT3}')
    e(f'v_add_u32 v10, s{sT2}, v{vL16}')
    if 3*region_stride+1024>65535: e(f'v_add_u32 v11, {2*region_stride}, v10')
    A.barrier()
    for k in range(4):
        for q in range(2):
            if 3*region_stride+1024>65535 and k>=2:
                A.ds(f'ds_read_b128 {v(red+8*k+4*q,4)}, v11 offset:{(k-2)*region_stride+1024*q}')
            else:
                A.ds(f'ds_read_b128 {v(red+8*k+4*q,4)}, v10 offset:{k*region_stride+1024*q}')
def gate_read(chunk, dst):
    e(f's_lshl_b32 s{sT2}, s{sCOL}, 6')
    e(f's_add_u32 s{sT2}, s{sT2}, {MODT+chunk*2048}')
    e(f'v_lshl_add_u32 v12, v{vH}, 4, s{sT2}')
    A.ds(f'ds_read_b128 {v(dst,4)}, v12')
    A.ds(f'ds_read_b128 {v(dst+4,4)}, v12 offset:32')
def red_sum(red):
    for i in range(8): e(f'v_add_f32 v{red+i}, v{red+i}, v{red+8+i}')
    for i in range(8): e(f'v_add_f32 v{red+16+i}, v{red+16+i}, v{red+24+i}')
    for i in range(8): e(f'v_add_f32 v{red+i}, v{red+i}, v{red+16+i}')
reduce4(16384, ACC, RED)
gate_read(2,120)
for i in range(4): unpack(128+2*i,129+2*i,16+i)
A.wait(lg='all')
red_sum(RED)
for i in range(8): e(f'v_fma_f32 v{128+i}, v{RED+i}, v{120+i}, v{128+i}')
for i in range(4): e(f'v_cvt_pk_bf16_f32 v{16+i}, v{128+2*i}, v{129+2*i}')
e(f's_lshl_b32 s{sT2}, s{sROW}, 5')
e(f's_add_u32 s{sT2}, s{sT2}, s{sCOL}')
e(f's_lshl_b32 s{sT2}, s{sT2}, 10')
e(f's_add_u32 s{sT2}, s{sT2}, {WS_X1}')
A.vmem(f'buffer_store_dwordx4 v[16:19], v{vL16}, {srd(SWS)}, s{sT2} offen{SC1}')
e(f's_mov_b32 s{sT4}, 0x3f803f80')
e('v_mov_b32 v120, 0'); e('v_mov_b32 v121, 0')
for i in range(4):
    e(f'v_dot2c_f32_bf16 v120, s{sT4}, v{16+i}')
    e(f'v_dot2c_f32_bf16 v121, v{16+i}, v{16+i}')
half_sum(120,122); half_sum(121,123)
e(f'v_and_b32 v13, 31, v{vL}')
e(f'v_lshlrev_b32 v13, 3, v13')
e(f's_lshl_b32 s{sT2}, s{sW}, 8')
e(f's_add_u32 s{sT2}, s{sT2}, {SPARE}')
e(f'v_add_u32 v14, s{sT2}, v13')
A.ds('ds_write_b64 v14, v[120:121]')
A.barrier()
e(f's_cmp_ge_u32 s{sW}, 2')
e('s_cbranch_scc1 NOST')
for k in range(4): e(f'ds_read_b64 {v(120+2*k,2)}, v14 offset:{512*k}')
e('s_waitcnt lgkmcnt(0)')
for i in range(2):
    e(f'v_add_f32 v{120+i}, v{120+i}, v{122+i}')
    e(f'v_add_f32 v{124+i}, v{124+i}, v{126+i}')
for i in range(2): e(f'v_add_f32 v{120+i}, v{120+i}, v{124+i}')
e(f's_lshl_b32 s{sT2}, s{sROW}, 3')
e(f's_and_b32 s{sT3}, s{sCI}, 7')
e(f's_add_u32 s{sT2}, s{sT2}, s{sT3}')
e(f's_lshl_b32 s{sT2}, s{sT2}, 8')
e(f's_add_u32 s{sT2}, s{sT2}, {WS_ST}')
e('s_mov_b64 exec, 0xffffffff')
e(f'buffer_store_dwordx2 v[120:121], v13, {srd(SWS)}, s{sT2} offen sc1')
e('s_mov_b64 exec, -1')
A.label('NOST')
A.vm=[1]
A.barrier(vm='all')
e(f's_cmp_lg_u32 s{sW}, 0')
e('s_cbranch_scc1 NOXF')
e(f's_lshl_b32 s{sT2}, s{sRB}, 7')
e(f's_lshl_b32 s{sT3}, s{sCI}, 2')
e(f's_add_u32 s{sT2}, s{sT2}, s{sT3}')
e(f's_add_u32 s{sT2}, s{sT2}, {WS_XF}')
e(f'v_mov_b32 v14, s{sT2}')
flag_store(14,15)
A.label('NOXF')
A.vm=[]
ts('x1pub')

e(f's_cmp_ge_u32 s{sCI}, 14')
e('s_cbranch_scc1 P5')
w1_dma(2,8)
ACC4=88; GS=[152,168]; T4=184
e(f's_lshl_b32 s{sT2}, s{sCI}, 8')
e(f'v_lshlrev_b32 v15, 3, v{vH}')
for c in range(4):
    for j in range(4):
        tb=A.vmem(f'buffer_load_dwordx2 {v(24+8*c+2*j,2)}, v15, {srd(SB1)}, s{sT2} offen offset:{64*c+16*j}')
e(f's_cmp_eq_u32 s{sKH}, 0')
e(f's_cselect_b32 s{sT2}, -1, 0')
e(f's_cselect_b32 s{sT3}, 0, -1')
A.wait(vm=tb)
for c in range(4):
    for i in range(8):
        e(f'v_and_b32 v{24+8*c+i}, s{sT2 if c<2 else sT3}, v{24+8*c+i}')
        unpack(ACC4+16*c+2*i, ACC4+16*c+2*i+1, 24+8*c+i)
e(f'v_lshl_add_u32 v9, v{vH}, 10, v{vTRL}')
for p,(reg) in enumerate((9,11,12)):
    pass
e(f's_mul_i32 s{sT2}, s{sKH}, {W1N[1]*4096}')
e(f's_add_u32 s{sT3}, s{sT2}, {W1P[1]}')
e(f'v_add_u32 v11, s{sT3}, v9')
e(f's_add_u32 s{sT3}, s{sT2}, {W1P[2]}')
e(f'v_add_u32 v12, s{sT3}, v9')
e(f's_mul_i32 s{sT2}, s{sKH}, {W1N[0]*4096}')
e(f's_add_u32 s{sT3}, s{sT2}, {W1P[0]}')
e(f'v_add_u32 v9, s{sT3}, v9')
e(f's_lshl_b32 s{sT2}, s{sKH}, 10')
e(f's_add_u32 s{sT2}, s{sT2}, {MODT}')
e(f'v_lshl_add_u32 v10, v{vH}, 4, s{sT2}')
e(f's_lshl_b32 s{sT2}, s{sRB}, 7')
e(f's_lshr_b32 s{sT3}, s{sTT}, 1')
e(f's_lshl_b32 s{sT3}, s{sT3}, 5')
e(f's_add_u32 s{sT2}, s{sT2}, s{sT3}')
e(f's_add_u32 s{sT2}, s{sT2}, {WS_XF}')
e(f'v_and_b32 v14, 7, v{vL}')
e(f'v_lshl_add_u32 v14, v14, 2, s{sT2}')
e(f's_lshl_b32 s{sT2}, s{sRB}, 2')
e(f's_add_u32 s67, s{sT2}, s{sTT}')
e(f's_lshl_b32 s{sT2}, s67, 11')
e(f's_add_u32 s{sT2}, s{sT2}, {WS_ST}')
e(f'v_and_b32 v13, 31, v{vL}')
e(f'v_lshlrev_b32 v13, 3, v13')
e(f'v_lshl_add_u32 v13, v{vH}, 10, v13')
e(f's_lshl_b32 s{sT3}, s67, 15')
e(f's_lshl_b32 s{sT4}, s{sKH}, 14')
e(f's_add_u32 s{sT3}, s{sT3}, s{sT4}')
e(f's_add_u32 s{sT3}, s{sT3}, {WS_X1}')
poll(14,15)
ts('x1flag')
for i in range(4):
    tst=A.vmem(f'buffer_load_dwordx2 {v(T4+2*i,2)}, v13, {srd(SWS)}, s{sT2} offen offset:{256*i}{SC1}')
ta={}
for ss in range(16):
    if ss and ss%4==0: e(f's_add_u32 s{sT3}, s{sT3}, 4096')
    ta[ss]=A.vmem(f'buffer_load_dwordx4 {v(X+4*ss,4)}, v{vL16}, {srd(SWS)}, s{sT3} offen offset:{1024*(ss&3)}{SC1}')
e('s_barrier')
def p4_gs(ss): return gs_read(ss&1, 3*2048+64*ss, 4*2048+64*ss, 32)
def p4_w(ss):
    if ss<W1N[0]: va,o=9,ss*4096
    elif ss<W1N[0]+W1N[1]: va,o=11,(ss-W1N[0])*4096
    else: va,o=12,(ss-W1N[0]-W1N[1])*4096
    for c in range(4): t=tr_frag(a_, 16*(ss&1)+4*c, va, o+256*c, o+256*c+2048)
    return t
tg={0:p4_gs(0),1:p4_gs(1)}
tw={0:p4_w(0)}
A.wait(vm=tst)
for i in range(2):
    e(f'v_add_f32 v{T4+i}, v{T4+i}, v{T4+2+i}')
    e(f'v_add_f32 v{T4+4+i}, v{T4+4+i}, v{T4+6+i}')
for i in range(2): e(f'v_add_f32 v{T4+i}, v{T4+i}, v{T4+4+i}')
half_sum(T4,T4+2); half_sum(T4+1,T4+3)
ln_finish(T4,T4+1,7,8,T4+2)
A.wait(vm=ta[0], lg=tg[0])
for o in norm_ops(0,True,T4): e(o)
for ss in range(16):
    if ss+2<16: tg[ss+2]=p4_gs(ss+2)
    A.wait(vm=ta.get(ss+1), lg=tw[ss])
    if ss+1<16:
        tw[ss+1]=p4_w(ss+1)
        A.wait(lg=tg[ss+1])
    mf=[f'{MF} {v(ACC4+16*c,16)}, {a_(16*(ss&1)+4*c,4)}, {v(X+4*ss,4)}, {v(ACC4+16*c,16)}' for c in range(4)]
    interleave(mf, norm_ops(ss+1,True,T4) if ss+1<16 else [])
A.barrier()
e(f's_lshl_b32 s{sT2}, s{sW}, 13')
e(f'v_add_u32 v9, s{sT2}, v{vL16}')
e(f's_xor_b32 s{sT2}, s{sT2}, 32768')
e(f'v_add_u32 v10, s{sT2}, v{vL16}')
e(f's_cmp_eq_u32 s{sKH}, 0')
e('s_cbranch_scc1 FR0')
for q in range(8): A.ds(f'ds_write_b128 v9, {v(ACC4+4*q,4)} offset:{1024*q}')
for i in range(32): e(f'v_mov_b32 v{ACC4+i}, v{ACC4+32+i}')
e('s_branch FR1')
A.label('FR0')
for q in range(8): e(f'ds_write_b128 v9, {v(ACC4+32+4*q,4)} offset:{1024*q}')
A.label('FR1')
A.barrier()
for q in range(8): A.ds(f'ds_read_b128 {v(X+4*q,4)}, v10 offset:{1024*q}')
e(f's_mul_i32 s{sT2}, s67, 112')
e(f's_lshl_b32 s{sT3}, s{sCI}, 3')
e(f's_add_u32 s{sT2}, s{sT2}, s{sT3}')
e(f's_lshl_b32 s{sT3}, s{sKH}, 2')
e(f's_add_u32 s{sT2}, s{sT2}, s{sT3}')
e(f's_lshl_b32 s{sT2}, s{sT2}, 10')
e(f's_add_u32 s{sT2}, s{sT2}, {WS_F}')
lgq=list(A.lg)
for f in range(4):
    A.wait(lg=lgq[2*f+1])
    for i in range(8): e(f'v_add_f32 v{ACC4+8*f+i}, v{ACC4+8*f+i}, v{X+8*f+i}')
    for i in range(8): e(f'v_max_f32 v{ACC4+8*f+i}, 0, v{ACC4+8*f+i}')
    for i in range(8): e(f'v_mul_f32 v{ACC4+8*f+i}, v{ACC4+8*f+i}, v{ACC4+8*f+i}')
    for i in range(4): e(f'v_cvt_pk_bf16_f32 v{ACC4+32+4*f+i}, v{ACC4+8*f+2*i}, v{ACC4+8*f+2*i+1}')
    A.vmem(f'buffer_store_dwordx4 {v(ACC4+32+4*f,4)}, v{vL16}, {srd(SWS)}, s{sT2} offen offset:{1024*f}{SC1}')
e(f's_lshl_b32 s{sT2}, s67, 7')
e(f's_lshl_b32 s{sT3}, s{sCI}, 3')
e(f's_add_u32 s{sT2}, s{sT2}, s{sT3}')
e(f's_lshl_b32 s{sT3}, s{sKH}, 2')
e(f's_add_u32 s{sT2}, s{sT2}, s{sT3}')
e(f's_add_u32 s{sT2}, s{sT2}, {WS_FF}')
e(f'v_mov_b32 v14, s{sT2}')
A.wait(vm='all')
flag_store(14,15)
A.barrier()
A.label('P5')
A.vm=[]; A.lg=[]
ts('fpub')
NS=18; RS=NS*2048
pat128(7,13,15)
e(f's_mul_i32 s{sT2}, s{sKQ}, {448*1024}')
e(f's_lshl_b32 s{sT3}, s{sTT2}, 13')
e(f's_add_u32 s{sT2}, s{sT2}, s{sT3}')
e(f's_and_b32 s{sT3}, s{sCI}, 7')
e(f's_lshl_b32 s{sT3}, s{sT3}, 7')
e(f's_add_u32 s{sT2}, s{sT2}, s{sT3}')
e(f's_mul_i32 s{sT3}, s{sKQ}, {RS}')
e(f's_lshl_b32 s{sT4}, s{sTT2}, 10')
e(f's_add_u32 s{sT3}, s{sT3}, s{sT4}')
e(f's_mov_b32 m0, s{sT3}')
e(f'v_add_u32 v11, s{sT3}, v{vL16}')
for j in range(NS):
    if j:
        e('s_add_u32 m0, m0, 2048')
        e(f's_add_u32 s{sT2}, s{sT2}, 16384')
    dma(SW2, 7, sT2)
for j in range(28-NS):
    e(f's_add_u32 s{sT2}, s{sT2}, 16384')
    A.vmem(f'buffer_load_dwordx4 {a_(24+4*j,4)}, v7, {srd(SW2)}, s{sT2} offen')
e(f's_mul_i32 s{sT3}, s{sKQ}, {RS}')
e(f'v_lshl_add_u32 v9, v{vH}, 9, v{vTRL}')
e(f'v_add_u32 v9, s{sT3}, v9')
e(f's_lshl_b32 s{sT2}, s{sROW}, 7')
e(f's_mul_i32 s{sT3}, s{sKQ}, 28')
e(f's_add_u32 s{sT2}, s{sT2}, s{sT3}')
e(f's_add_u32 s{sT2}, s{sT2}, {WS_FF}')
e(f'v_min_u32 v14, 6, v{vL}')
e(f'v_lshl_add_u32 v14, v14, 2, s{sT2}')
e(f's_mul_i32 s{sT2}, s{sROW}, 112')
e(f's_add_u32 s{sT2}, s{sT2}, s{sT3}')
e(f's_lshl_b32 s{sT2}, s{sT2}, 10')
e(f's_add_u32 s{sT2}, s{sT2}, {WS_F}')
poll(14,15)
ts('fflag')
AF5=24; ACC5=136
ta={}
for ss in range(28):
    if ss and ss%4==0: e(f's_add_u32 s{sT2}, s{sT2}, 4096')
    ta[ss]=A.vmem(f'buffer_load_dwordx4 {v(AF5+4*ss,4)}, v{vL16}, {srd(SWS)}, s{sT2} offen offset:{1024*(ss&3)}{SC1}')
e('s_barrier')
tw={}
def slot(ss): return (ss if ss<NS else ss-NS)*2048
for ss in range(2): tw[ss]=w2c(ss, slot(ss), 8*(ss%3))
for ss in range(28):
    if ss==28-NS:
        A.barrier()
        for j in range(28-NS): A.ds(f'ds_write_b128 v11, {a_(24+4*j,4)} offset:{2048*j}')
    if ss+2==NS: A.barrier()
    if ss+2<28: tw[ss+2]=w2c(ss+2, slot(ss+2), 8*((ss+2)%3))
    A.wait(vm=ta[ss], lg=tw[ss])
    for c in range(2):
        e(f'{MF} {v(ACC5+16*c,16)}, {a_(8*(ss%3)+4*c,4)}, {v(AF5+4*ss,4)}, '+('0' if ss==0 else v(ACC5+16*c,16)))
ts('ffn2mm')
RED5=24
reduce4(RS, ACC5, RED5)
gate_read(5,56)
for i in range(4): unpack(64+2*i,65+2*i,16+i)
for i in range(4): unpack(72+2*i,73+2*i,20+i)
e(f'v_and_b32 v13, 31, v{vL}')
e(f'v_lshlrev_b32 v13, 10, v13')
e(f'v_lshl_add_u32 v13, v{vH}, 4, v13')
A.wait(lg='all')
red_sum(RED5)
for i in range(8): e(f'v_add_f32 v{RED5+i}, v{RED5+i}, v{72+i}')
for i in range(8): e(f'v_fma_f32 v{64+i}, v{RED5+i}, v{56+i}, v{64+i}')
for i in range(4): e(f'v_cvt_pk_bf16_f32 v{80+i}, v{64+2*i}, v{65+2*i}')
e('v_permlane32_swap_b32 v80, v82')
e('v_permlane32_swap_b32 v81, v83')
A.vmem(f'buffer_store_dwordx4 v[80:83], v13, {srd(SOUT)}, s66 offen')
ts('end')
if DEBUG_TS:
    e(f's_lshl_b32 s{sT2}, s2, 3')
    e(f's_add_u32 s{sT2}, s{sT2}, s{sW}')
    e(f's_lshl_b32 s{sT2}, s{sT2}, 8')
    e(f's_add_u32 s{sT2}, s{sT2}, {WS_TS}')
    e(f'v_lshlrev_b32 v13, 2, v{vL}')
    e(f's_getreg_b32 s{sT3}, hwreg(HW_REG_XCC_ID)')
    e(f'v_writelane_b32 v{vTS}, s{sT3}, 63')
    A.vmem(f'buffer_store_dword v{vTS}, v13, {srd(SWS)}, s{sT2} offen')
e(f's_cmp_lg_u32 s{sW}, 7')
e('s_cbranch_scc1 FIN')
e(f'v_readfirstlane_b32 s{sT2}, v{vATM}')
e(f's_cmp_lg_u32 s{sT2}, 255')
e('s_cbranch_scc1 FIN')
e('v_mov_b32 v14, 0')
flag_store(14,15)
A.label('FIN')
e('s_waitcnt vmcnt(0)')
A.label('END')
e('s_endpgm')

hdr = open('cdna_kernels/'+NAME+'.s.ref').read().split('; Override launch')[0]
out = hdr + f'''; generated by gen/gen.py (hand-written generator)
; @launch grid=(256,1,1) block=(512,1,1) lds={LDS_BYTES}
.amdgcn_target "amdgcn-amd-amdhsa--gfx950"
.text
.globl {NAME}_kernel
.p2align 8
.type {NAME}_kernel,@function
{NAME}_kernel:
''' + A.finalize() + f'''.section .rodata,"a"
.p2align 6
.amdhsa_kernel {NAME}_kernel
  .amdhsa_next_free_vgpr 256
  .amdhsa_next_free_sgpr 102
  .amdhsa_accum_offset 192
  .amdhsa_group_segment_fixed_size 0
  .amdhsa_kernarg_size 104
  .amdhsa_user_sgpr_count 2
  .amdhsa_user_sgpr_kernarg_segment_ptr 1
  .amdhsa_system_sgpr_workgroup_id_x 1
.end_amdhsa_kernel
'''
dst = [x for x in sys.argv[1:] if not x.startswith('--')]
open(dst[0] if dst else 'cdna_kernels/'+NAME+'.s','w').write(out)
```
